```python
import torch

def _softmax(x, axis=-1):
    return torch.softmax(x, dim=axis)
def _gelu(x):
    return torch.nn.functional.gelu(x, approximate="tanh")
def _silu(x):
    return torch.nn.functional.silu(x)
def _sigmoid(x):
    return torch.sigmoid(x)
def _layernorm(x, axis=-1, eps=1e-5):
    m = x.mean(dim=axis, keepdim=True)
    v = x.var(dim=axis, keepdim=True, unbiased=False)
    return (x - m) / torch.sqrt(v + eps)
def _scatter_add(tgt, idx, src, axis=0):
    return tgt.clone().index_add_(axis, idx, src)
def _segment_sum(src, seg, n):
    out = torch.zeros((n,) + src.shape[1:], dtype=src.dtype)
    return out.index_add_(0, seg, src)
def _pad(x, pw):
    flat = tuple(v for pair in reversed(pw) for v in pair)
    return torch.nn.functional.pad(x, flat)

kernel_name = 'standalone__gqa_block_cached__near_ridge'

def setup_inputs():

    _w = (lambda a: (lambda t: t.to(torch.bfloat16) if t.is_floating_point() else t)(torch.as_tensor(a)))
    B, Sq, D = 8, 112, 576
    Hq, Hkv, Sk, Dh = 32, 16, 1024, 128
    assert Hq % Hkv == 0, (Hq, Hkv)
    return {
        "x": _w((lambda *s: torch.randn(*s, dtype=torch.bfloat16) * 0.8)(B, Sq, D)),
        "k_cache": _w((lambda *s: torch.randn(*s, dtype=torch.bfloat16) * 0.8)(B, Hkv, Sk, Dh)),
        "v_cache": _w((lambda *s: torch.randn(*s, dtype=torch.bfloat16) * 0.05)(B, Hkv, Sk, Dh)),
        "wq": _w((lambda *s: torch.randn(*s, dtype=torch.bfloat16) * 0.8)(D, Hq * Dh) * (D ** -0.5)),
        "wo": _w((lambda *s: torch.randn(*s, dtype=torch.bfloat16) * 0.05)(Hq * Dh, D) * ((Hq * Dh) ** -0.5)),
    }

def reference(x, k_cache, v_cache, wq, wo):
    B, Sq, D = x.shape
    Hq, Dh = 32, 128
    Hkv = k_cache.shape[1]
    rep = Hq // Hkv
    q = (lambda x, *d: x.permute(*d))((x @ wq).reshape(B, Sq, Hq, Dh), 0, 2, 1, 3)
    k = (lambda x, n, axis: torch.repeat_interleave(x, n, dim=axis))(k_cache, rep, axis=1)
    v = (lambda x, n, axis: torch.repeat_interleave(x, n, dim=axis))(v_cache, rep, axis=1)
    scores = torch.einsum("bhqd,bhkd->bhqk", q, k) * (Dh ** -0.5)
    p = _softmax(scores, axis=-1)
    o = torch.einsum("bhqk,bhkd->bhqd", p, v)
    return (lambda x, *d: x.permute(*d))(o, 0, 2, 1, 3).reshape(B, Sq, Hq * Dh) @ wo
```

```python
KN = "standalone__gqa_block_cached__near_ridge"

HEADER = """; generated
"""

class Asm:
    def __init__(self):
        self.lines = []
        self.nlab = 0
    def __call__(self, s, *a):
        for l in s.split("\n"):
            self.lines.append("    " + l.strip() if l.strip() and not l.strip().endswith(":") else l.strip())
    def c(self, s):
        self.lines.append("    ; " + s)
    def label(self, name):
        self.lines.append(name + ":")
    def newlabel(self, base="L"):
        self.nlab += 1
        return "%s_%d" % (base, self.nlab)
    def text(self):
        return "\n".join(self.lines) + "\n"

def kernel_begin(name):
    return f""".globl {name}
.p2align 8
.type {name},@function
{name}:
"""

def kernel_desc(name, vgpr, sgpr, accum, wgy=False):
    s = f""".section .rodata,"a"
.p2align 6
.amdhsa_kernel {name}
  .amdhsa_next_free_vgpr {vgpr}
  .amdhsa_next_free_sgpr {sgpr}
  .amdhsa_accum_offset {accum}
  .amdhsa_group_segment_fixed_size 0
  .amdhsa_kernarg_size 64
  .amdhsa_user_sgpr_count 2
  .amdhsa_user_sgpr_kernarg_segment_ptr 1
  .amdhsa_system_sgpr_workgroup_id_x 1
"""
    if wgy:
        s += "  .amdhsa_system_sgpr_workgroup_id_y 1\n"
    s += "  .amdhsa_float_denorm_mode_32 3\n" if False else ""
    s += ".end_amdhsa_kernel\n"
    return s

def file_text(kernels):
    out = []
    for k in kernels:
        g = k["grid"]; b = k["block"]
        out.append(f"; @launch kernel={k['name']} grid=({g[0]},{g[1]},{g[2]}) block=({b[0]},{b[1]},{b[2]}) lds={k['lds']}")
    txt = "\n".join(out) + "\n"
    txt += '.amdgcn_target "amdgcn-amd-amdhsa--gfx950"\n.text\n'
    seen = set()
    for k in kernels:
        if k["name"] in seen: continue
        seen.add(k["name"])
        txt += kernel_begin(k["name"]) + k["body"] + "\n"
    seen = set()
    for k in kernels:
        if k["name"] in seen: continue
        seen.add(k["name"])
        txt += kernel_desc(k["name"], k["vgpr"], k["sgpr"], k["accum"], k.get("wgy", False))
    return txt
```

```python
import sys, struct
from asmlib import *

def f2u(x):
    return struct.unpack("<I", struct.pack("<f", x))[0]

QSCALE = 1.4426950408889634 * (128 ** -0.5)

WIN = 49152
VBASE = 98304
NSTAGE = 18

class CfgA:
    def __init__(self, **kw):
        self.nt_kv = False
        self.stamps = False
        self.sc_o = ""
        self.fallback = True
        self.__dict__.update(kw)

V_LANE = 0
V_KA = 4
V_VA = 12
V_S = 16
V_SP = 48
V_L = 48
V_P = 80
V_Q = 96
V_WA = 96
V_XA = 100
V_O = 128
A_K = 0
A_V = 32

def vr(b, n=1):
    return f"v{b}" if n == 1 else f"v[{b}:{b+n-1}]"
def ar(b, n=1):
    return f"a{b}" if n == 1 else f"a[{b}:{b+n-1}]"

def stamp(a, cfg, idx, sreg=60):
    if cfg.stamps:
        a(f"s_memrealtime s[{sreg+2*idx}:{sreg+2*idx+1}]")

def gen_A(cfg):
    a = Asm()
    kvsfx = " nt" if cfg.nt_kv else ""
    a("s_cmp_ge_u32 s2, 256")
    a("s_cbranch_scc1 LA_end")
    a("s_load_dwordx16 s[4:19], s[0:1], 0")
    stamp(a, cfg, 0)
    a("v_lshrrev_b32 v1, 6, v0")
    a("v_and_b32 v0, 63, v0")
    a("v_readfirstlane_b32 s23, v1")
    a("s_and_b32 s24, s2, 7")
    a("s_lshr_b32 s25, s2, 3")
    a("s_lshr_b32 s20, s25, 2")
    a("s_and_b32 s25, s25, 3")
    a("s_lshl_b32 s21, s24, 2")
    a("s_add_u32 s21, s21, s25")
    a("s_lshr_b32 s22, s21, 1")
    a("s_waitcnt lgkmcnt(0)")
    a("s_cmp_eq_u32 s23, 4"); a("s_cbranch_scc1 LA_prodW")
    a("s_cmp_eq_u32 s23, 5"); a("s_cbranch_scc1 LA_prodX")
    a("s_cmp_eq_u32 s23, 6"); a("s_cbranch_scc1 LA_prodK")
    a("s_cmp_eq_u32 s23, 7"); a("s_cbranch_scc1 LA_prodV")

    a("v_lshrrev_b32 v1, 5, v0")
    a("v_and_b32 v2, 31, v0")
    a("v_and_b32 v3, 15, v0")
    a("v_xor_b32 v48, v1, v3")
    a("v_lshlrev_b32 v48, 4, v48")
    a("v_lshlrev_b32 v49, 8, v2")
    a(f"v_add_u32 v{V_KA}, v48, v49")
    for j in range(1, 8):
        a(f"v_xor_b32 v{V_KA+j}, {j<<5}, v{V_KA}")
    a("v_lshrrev_b32 v50, 2, v3")
    a("v_bfe_u32 v51, v0, 4, 1")
    a("v_and_b32 v52, 3, v0")
    a("v_lshlrev_b32 v53, 2, v1")
    a("v_add_u32 v53, v53, v50")
    a("v_lshlrev_b32 v53, 8, v53")
    a("v_lshlrev_b32 v54, 5, v51")
    a("v_add_u32 v53, v53, v54")
    a("v_lshlrev_b32 v54, 3, v52")
    a("v_add_u32 v53, v53, v54")
    a(f"v_add_u32 v53, {VBASE}, v53")
    for dt in range(4):
        a(f"v_xor_b32 v54, {dt}, v50")
        a("v_lshlrev_b32 v54, 6, v54")
        a(f"v_add_u32 v{V_VA+dt}, v53, v54")
    a("v_lshlrev_b32 v53, 3, v1")
    a("v_add_u32 v53, v53, v50")
    a("v_lshlrev_b32 v53, 8, v53")
    a("v_lshlrev_b32 v54, 5, v51")
    a("v_add_u32 v53, v53, v54")
    a("v_and_b32 v54, 1, v52")
    a("v_lshlrev_b32 v54, 4, v54")
    a("v_add_u32 v53, v53, v54")
    a("v_lshrrev_b32 v54, 1, v52")
    a("v_lshlrev_b32 v54, 3, v54")
    a("v_add_u32 v53, v53, v54")
    a(f"v_add_u32 v53, {WIN}, v53")
    for dt in range(4):
        a(f"v_xor_b32 v54, {dt}, v50")
        a("v_lshlrev_b32 v54, 6, v54")
        a(f"v_add_u32 v{V_WA+dt}, v53, v54")
    a("s_lshl_b32 s24, s23, 11")
    a(f"s_add_u32 s24, s24, {WIN + 8192}")
    a("v_lshlrev_b32 v53, 6, v2")
    a("v_add_u32 v53, s24, v53")
    a("v_bfe_u32 v54, v2, 2, 2")
    a("v_xor_b32 v54, v54, v1")
    a("v_lshlrev_b32 v54, 4, v54")
    a(f"v_add_u32 v{V_XA}, v53, v54")
    a(f"v_xor_b32 v{V_XA+1}, 32, v{V_XA}")
    for i in range(64):
        a(f"v_mov_b32 v{V_O+i}, 0")
    for i in range(64):
        a(f"v_mov_b32 v{V_S+i}, 0")

    def qacc(dt):
        return V_S + 16 * dt

    def p1_reads(sb, par):
        out = []
        for u in range(2):
            out.append(f"ds_read_b128 {vr(V_P + 8*par + 4*u, 4)}, v{V_XA+u} offset:{sb*16384}")
        for u in range(2):
            for dt in range(4):
                base = 32 * par + 4 * (4 * u + dt)
                for v in range(2):
                    out.append(f"ds_read_b64_tr_b16 {ar(base + 2*v, 2)}, v{V_WA+dt} offset:{sb*16384 + (16*u + 4*v)*256}")
        return out

    def p1_mfmas(par):
        out = []
        for u in range(2):
            for dt in range(4):
                base = 32 * par + 4 * (4 * u + dt)
                out.append(f"v_mfma_f32_32x32x16_bf16 {vr(qacc(dt),16)}, {ar(base,4)}, {vr(V_P + 8*par + 4*u,4)}, {vr(qacc(dt),16)}")
        return out

    def k_reads(t):
        slot = t % 8
        return [f"ds_read_b128 {ar(A_K + 4*j, 4)}, v{V_KA+j} offset:{slot*8192}" for j in range(8)]

    a("s_barrier")
    stamp(a, cfg, 1)
    for r in p1_reads(0, 0):
        a(r)
    a("s_waitcnt lgkmcnt(0)")
    a("s_mov_b32 s30, 0")
    a.label("LA_p1loop")
    for ii in range(4):
        if ii == 1:
            a("s_cmp_eq_u32 s30, 4")
            a("s_cbranch_scc1 LA_p1last")
        a("s_barrier")
        rd = p1_reads((ii + 1) % 4, (ii + 1) % 2)
        mf = p1_mfmas(ii % 2)
        k = 0
        for g, m in enumerate(mf):
            a(m)
            for _ in range(3):
                if k < len(rd):
                    a(rd[k]); k += 1
        a("s_waitcnt lgkmcnt(0)")
    a("s_add_u32 s30, s30, 1")
    a("s_branch LA_p1loop")
    a.label("LA_p1last")
    a("s_barrier")
    mf = p1_mfmas(1)
    rd = k_reads(0)
    for g, m in enumerate(mf):
        a(m)
        a(rd[g])
    stamp(a, cfg, 2)
    a(f"s_mov_b32 s31, {f2u(QSCALE):#x}")
    a("s_nop 7")
    a("s_nop 3")
    for dt in range(4):
        for t in range(2):
            for i in range(4):
                r0 = qacc(dt) + 8 * t + 2 * i
                a(f"v_mul_f32 v{r0}, s31, v{r0}")
                a(f"v_mul_f32 v{r0+1}, s31, v{r0+1}")
            for i in range(4):
                r0 = qacc(dt) + 8 * t + 2 * i
                a(f"v_cvt_pk_bf16_f32 v{V_Q + 4*(2*dt+t) + i}, v{r0}, v{r0+1}")
    a(f"v_mov_b32 v{V_L}, 0")

    def step(t_mod8, first=False, drain=False):
        t = t_mod8
        p = t & 1
        Sp, So = V_S + 16 * p, V_S + 16 * (1 - p)
        Pp, Po = V_P + 8 * p, V_P + 8 * (1 - p)
        mf = []
        if not drain:
            for j in range(8):
                c = "0" if j == 0 else vr(Sp, 16)
                mf.append(f"v_mfma_f32_32x32x16_bf16 {vr(Sp,16)}, {ar(A_K+4*j,4)}, {vr(V_Q+4*j,4)}, {c}")
        else:
            mf += [None] * 8
        for idx in range(8):
            u, dt = idx >> 2, idx & 3
            if first:
                mf.append(None)
            else:
                mf.append(f"v_mfma_f32_32x32x16_bf16 {vr(V_O+16*dt,16)}, {ar(A_V+4*idx,4)}, {vr(Po+4*u,4)}, {vr(V_O+16*dt,16)}")
        fill = [[] for _ in range(16)]
        def expi(buf, e): return f"v_exp_f32 v{buf+e}, v{buf+e}"
        def addi(buf, e): return f"v_add_f32 v{V_L}, v{V_L}, v{buf+e}"
        def cvti(buf, pb, k): return f"v_cvt_pk_bf16_f32 v{pb+k}, v{buf+2*k}, v{buf+2*k+1}"
        for g in range(16):
            cur = None
            if g <= 9:
                if not first: cur = (So, Po, 6 + g)
            else:
                if not drain: cur = (Sp, Pp, g - 10)
            prev = None
            if g == 0:
                if not first: prev = (So, Po, 5)
            elif g <= 10:
                if not first: prev = (So, Po, 5 + g)
            else:
                if not drain: prev = (Sp, Pp, g - 11)
            if cur: fill[g].append(expi(cur[0], cur[2]))
            if prev:
                fill[g].append(addi(prev[0], prev[2]))
                if prev[2] & 1:
                    fill[g].append(cvti(prev[0], prev[1], prev[2] >> 1))
        if not drain:
            kr = k_reads(t + 1)
            for j in range(8):
                fill[j].append(kr[j])
            pos = (t + 2) % 8
            for idx in range(8):
                u, dt = idx >> 2, idx & 3
                for v in range(2):
                    fill[8 + idx].append(f"ds_read_b64_tr_b16 {ar(A_V + 4*idx + 2*v, 2)}, v{V_VA+dt} offset:{pos*8192 + (16*u + 8*v)*256}")
        for g in range(16):
            if g == 0:
                if not drain:
                    a("s_waitcnt lgkmcnt(15)" if not first else "s_waitcnt lgkmcnt(0)")
            if g == 8 and not first:
                a("s_waitcnt lgkmcnt(8)" if not drain else "s_waitcnt lgkmcnt(0)")
            if mf[g]:
                a(mf[g])
            if g == 0 and not drain:
                a("s_barrier")
            if first and g == 10:
                a("s_nop 7"); a("s_nop 3")
            if drain and g == 11:
                a("s_nop 1")
            for f in fill[g]:
                a(f)

    step(0, first=True)
    a("s_mov_b32 s30, 0")
    a.label("LA_p2loop")
    for k in range(1, 9):
        if k == 8:
            a("s_cmp_eq_u32 s30, 3")
            a("s_cbranch_scc1 LA_drain")
        step(k % 8)
    a("s_add_u32 s30, s30, 1")
    a("s_branch LA_p2loop")
    a.label("LA_drain")
    step(0, drain=True)
    stamp(a, cfg, 3)
    a("s_barrier")
    a(f"v_mov_b32 v49, v{V_L}")
    a("s_nop 1")
    a(f"v_permlane32_swap_b32 v{V_L}, v49")
    a("s_nop 1")
    a(f"v_add_f32 v{V_L}, v{V_L}, v49")
    if cfg.fallback:
        a(f"s_mov_b32 s32, {f2u(2.0**-30):#x}")
        a(f"s_mov_b32 s33, {f2u(2.0**30):#x}")
        a(f"v_cmp_nge_f32 vcc, v{V_L}, s32" if False else f"v_cmp_le_f32 vcc, s32, v{V_L}")
        a(f"v_cmp_ge_f32 s[34:35], s33, v{V_L}")
        a("s_nop 1")
        a("s_and_b64 s[34:35], s[34:35], vcc")
        a("s_mov_b64 s[36:37], -1")
        a("s_cmp_eq_u32 s23, 3")
        a("s_cselect_b32 s36, 0xffff, s36")
        a("s_cselect_b32 s37, 0xffff, s37")
        a("s_andn2_b64 s[36:37], s[36:37], s[34:35]")
        a("s_cbranch_scc1 LA_fallback")
    a.label("LA_epi")
    a(f"v_rcp_f32 v50, v{V_L}")
    a("s_mul_i32 s24, s20, 7")
    a("s_lshl_b32 s25, s23, 1")
    a("s_add_u32 s24, s24, s25")
    a("s_lshl_b32 s24, s24, 8")
    a("s_lshl_b32 s25, s21, 3")
    a("s_add_u32 s24, s24, s25")
    a("s_lshl_b32 s24, s24, 9")
    a("v_bfe_u32 v51, v0, 4, 1")
    a("v_lshlrev_b32 v51, 17, v51")
    a("v_lshrrev_b32 v52, 5, v0")
    a("v_lshlrev_b32 v52, 8, v52")
    a("v_add_u32 v51, v51, v52")
    a("v_and_b32 v52, 15, v0")
    a("v_lshlrev_b32 v52, 4, v52")
    a("v_add_u32 v51, v51, v52")
    a("s_mov_b32 s40, s18"); a("s_mov_b32 s41, s19"); a(f"s_mov_b32 s42, {56*256*512}"); a("s_mov_b32 s43, 0x20000")
    a("s_mov_b64 s[36:37], -1")
    a("s_cmp_eq_u32 s23, 3")
    a("s_cselect_b32 s36, 0xffff, s36")
    a("s_cselect_b32 s37, 0xffff, s37")
    for dt in range(4):
        for u in range(2):
            b0 = V_O + 16 * dt + 8 * u
            for i in range(8):
                a(f"v_mul_f32 v{b0+i}, v{b0+i}, v50")
            dst = 56 + 4 * ((2 * dt + u) % 4)
            for i in range(4):
                a(f"v_cvt_pk_bf16_f32 v{dst+i}, v{b0+2*i}, v{b0+2*i+1}")
            a("s_mov_b64 exec, s[36:37]")
            a(f"buffer_store_dwordx4 {vr(dst,4)}, v51, s[40:43], s24 offen offset:{(2*dt+u)*512}{cfg.sc_o}")
            a("s_mov_b64 exec, -1")
    if cfg.stamps:
        a("s_waitcnt vmcnt(0)")
        stamp(a, cfg, 4)
        a("s_waitcnt lgkmcnt(0)")
        a("s_cmp_lg_u32 s23, 0"); a("s_cbranch_scc1 LA_end")
        a("s_mov_b32 s44, s18"); a("s_mov_b32 s45, s19"); a("s_mov_b32 s46, 0x4000000"); a("s_mov_b32 s47, 0x20000")
        for i in range(5):
            a(f"v_mov_b32 v{56+i}, s{60+2*i}")
        a("s_lshl_b32 s24, s2, 5"); a(f"s_add_u32 s24, s24, {0x2000000}")
        a("v_mov_b32 v51, 0")
        a("v_cmp_eq_u32 vcc, 0, v0"); a("s_and_saveexec_b64 s[36:37], vcc")
        a("buffer_store_dwordx4 v[56:59], v51, s[44:47], s24 offen")
        a("buffer_store_dword v60, v51, s[44:47], s24 offen offset:16")
    a("s_endpgm")

    if cfg.fallback:
        a.label("LA_fallback")
        a("s_lshl_b32 s50, s23, 15")
        a("s_lshl_b32 s24, s20, 4"); a("s_add_u32 s24, s24, s22"); a("s_lshl_b32 s24, s24, 18")
        a("s_add_u32 s44, s6, s24"); a("s_addc_u32 s45, s7, 0"); a("s_mov_b32 s46, 262144"); a("s_mov_b32 s47, 0x20000")
        a("s_add_u32 s52, s8, s24"); a("s_addc_u32 s53, s9, 0"); a("s_mov_b32 s54, 262144"); a("s_mov_b32 s55, 0x20000")
        a("v_lshrrev_b32 v61, 4, v0")
        a("v_and_b32 v62, 15, v0")
        for j in range(4):
            a(f"v_add_u32 v63, {4*j}, v61")
            a("v_xor_b32 v63, v63, v62")
            a("v_lshlrev_b32 v63, 4, v63")
            a("v_lshlrev_b32 v64, 8, v61")
            a(f"v_add_u32 v{56+j}, v63, v64")
        a("v_lshlrev_b32 v63, 2, v61")
        a("v_xor_b32 v63, v63, v62")
        a("v_lshlrev_b32 v63, 4, v63")
        a("v_lshlrev_b32 v64, 8, v61")
        a("v_add_u32 v60, v63, v64")
        for j in range(8):
            a(f"v_add_u32 v{66+j}, s50, v{V_KA+j}")
        a(f"s_add_u32 s51, s50, 8192")
        a(f"s_sub_u32 s51, s51, {VBASE}")
        for dt in range(4):
            a(f"v_add_u32 v{74+dt}, s51, v{V_VA+dt}")
        def load_tile(srd, voffs, ldsoff):
            for i in range(8):
                if i % 4 == 0:
                    a(f"s_add_u32 m0, s50, {ldsoff + (i>>2)*4096}")
                    a(f"s_add_u32 s57, s56, {(i>>2)*4096}")
                a(f"buffer_load_dwordx4 v{voffs[i&3]}, {srd}, s57 offen offset:{(i&3)*1024} lds")
        def s_tile():
            for j in range(8):
                a(f"ds_read_b128 {ar(A_K+4*j,4)}, v{66+j}")
            a("s_waitcnt lgkmcnt(0)")
            for j in range(8):
                c = "0" if j == 0 else vr(V_S, 16)
                a(f"v_mfma_f32_32x32x16_bf16 {vr(V_S,16)}, {ar(A_K+4*j,4)}, {vr(V_Q+4*j,4)}, {c}")
            a("s_nop 7"); a("s_nop 7")
        a(f"v_mov_b32 v50, 0xff800000")
        a("s_mov_b32 s56, 0")
        a.label("LA_fb1")
        load_tile("s[44:47]", [56, 57, 58, 59], 0)
        a("s_waitcnt vmcnt(0)")
        s_tile()
        for e in range(16):
            a(f"v_max_f32 v50, v50, v{V_S+e}")
        a("s_add_u32 s56, s56, 8192")
        a("s_cmp_lt_u32 s56, 262144")
        a("s_cbranch_scc1 LA_fb1")
        a("v_mov_b32 v49, v50")
        a("s_nop 1")
        a("v_permlane32_swap_b32 v50, v49")
        a("s_nop 1")
        a("v_max_f32 v50, v50, v49")
        for i in range(64):
            a(f"v_mov_b32 v{V_O+i}, 0")
        a(f"v_mov_b32 v{V_L}, 0")
        a("s_mov_b32 s56, 0")
        a.label("LA_fb2")
        load_tile("s[44:47]", [56, 57, 58, 59], 0)
        load_tile("s[52:55]", [60, 60, 60, 60], 8192)
        a("s_waitcnt vmcnt(0)")
        s_tile()
        for e in range(16):
            a(f"v_sub_f32 v{V_S+e}, v{V_S+e}, v50")
        for e in range(16):
            a(f"v_exp_f32 v{V_S+e}, v{V_S+e}")
        a("s_nop 0")
        for e in range(16):
            a(f"v_add_f32 v{V_L}, v{V_L}, v{V_S+e}")
        for k in range(8):
            a(f"v_cvt_pk_bf16_f32 v{V_P+k}, v{V_S+2*k}, v{V_S+2*k+1}")
        for idx in range(8):
            u, dt = idx >> 2, idx & 3
            for v in range(2):
                a(f"ds_read_b64_tr_b16 {ar(A_V + 4*idx + 2*v, 2)}, v{74+dt} offset:{(16*u + 8*v)*256}")
        a("s_waitcnt lgkmcnt(0)")
        for idx in range(8):
            u, dt = idx >> 2, idx & 3
            a(f"v_mfma_f32_32x32x16_bf16 {vr(V_O+16*dt,16)}, {ar(A_V+4*idx,4)}, {vr(V_P+4*u,4)}, {vr(V_O+16*dt,16)}")
        a("s_add_u32 s56, s56, 8192")
        a("s_cmp_lt_u32 s56, 262144")
        a("s_cbranch_scc1 LA_fb2")
        a("s_nop 7"); a("s_nop 7")
        a(f"v_mov_b32 v49, v{V_L}")
        a("s_nop 1")
        a(f"v_permlane32_swap_b32 v{V_L}, v49")
        a("s_nop 1")
        a(f"v_add_f32 v{V_L}, v{V_L}, v49")
        a("s_branch LA_epi")

    def issue8(srd, voffs, m0expr_base, soff_reg, n=8, comp=None):
        for i in range(n):
            extra = comp(i) if comp else (i >> 2) * 4096
            if i % 4 == 0:
                a(f"s_add_u32 m0, {m0expr_base}, {(i>>2)*4096}")
            if comp or i % 4 == 0:
                a(f"s_add_u32 s49, {soff_reg}, {extra}")
            a(f"buffer_load_dwordx4 v{voffs[i&3]}, {srd}, s49 offen offset:{(i&3)*1024}{issue8.sfx} lds")
    issue8.sfx = ""

    a.label("LA_prodW")
    a("s_lshl_b32 s24, s21, 8")
    a("s_add_u32 s32, s10, s24"); a("s_addc_u32 s33, s11, 0")
    a(f"s_sub_u32 s34, {576*8192}, s24"); a("s_mov_b32 s35, 0x20000")
    a("v_lshrrev_b32 v1, 4, v0"); a("v_and_b32 v2, 15, v0")
    a("v_lshlrev_b32 v3, 2, v1"); a("v_xor_b32 v3, v3, v2"); a("v_lshlrev_b32 v3, 4, v3")
    a("v_lshlrev_b32 v4, 13, v1"); a("v_add_u32 v4, v4, v3")
    compW = lambda i: 4 * i * 8192 - (i & 3) * 1024
    def prod_stage_loop(srd, voff, ninst, comp, ldsoff, stage_stride, tag):
        a("s_mov_b32 s45, 0")
        for st in range(4):
            a(f"s_mov_b32 s46, {WIN + st*16384 + ldsoff}")
            issue8(srd, [voff]*4, "s46", "s45", ninst, comp)
            a(f"s_add_u32 s45, s45, {stage_stride}")
        a(f"s_waitcnt vmcnt({3*ninst})")
        a("s_barrier")
        a("s_mov_b32 s44, 1")
        a(f"s_mov_b32 s47, 0")
        a.label(f"LA_{tag}_loop")
        a(f"s_waitcnt vmcnt({2*ninst})")
        a("s_barrier")
        a(f"s_add_u32 s46, s47, {WIN + ldsoff}")
        issue8(srd, [voff]*4, "s46", "s45", ninst, comp)
        a(f"s_add_u32 s45, s45, {stage_stride}")
        a("s_add_u32 s47, s47, 16384")
        a("s_and_b32 s47, s47, 0xffff")
        a("s_add_u32 s44, s44, 1")
        a("s_cmp_lt_u32 s44, 15")
        a(f"s_cbranch_scc1 LA_{tag}_loop")
        a(f"s_waitcnt vmcnt({2*ninst})"); a("s_barrier")
        a(f"s_waitcnt vmcnt({ninst})"); a("s_barrier")
        a("s_waitcnt vmcnt(0)"); a("s_barrier")
        a("s_endpgm")
    prod_stage_loop("s[32:35]", 4, 8, compW, 0, 32 * 8192, "w")

    a.label("LA_prodX")
    a("s_mul_i32 s24, s20, 129024")
    a("s_add_u32 s36, s4, s24"); a("s_addc_u32 s37, s5, 0")
    a("s_mov_b32 s38, 129024"); a("s_mov_b32 s39, 0x20000")
    a("v_lshrrev_b32 v1, 2, v0"); a("s_mov_b32 s24, 1152"); a("v_mul_lo_u32 v1, v1, s24")
    a("v_and_b32 v2, 3, v0"); a("v_lshrrev_b32 v3, 4, v0"); a("v_xor_b32 v2, v2, v3"); a("v_lshlrev_b32 v2, 4, v2")
    a("v_add_u32 v4, v1, v2")
    compX = lambda j: j * 18432 - (j & 3) * 1024
    prod_stage_loop("s[36:39]", 4, 7, compX, 8192, 64, "x")

    def prod_kv(tag, ptr_lo, voffs_setup, voffs, slot_of, first_issue_t, lead):
        a.label(f"LA_prod{tag}")
        a("s_lshl_b32 s24, s20, 4"); a("s_add_u32 s24, s24, s22"); a("s_lshl_b32 s24, s24, 18")
        a(f"s_add_u32 s24, s{ptr_lo}, s24"); a(f"s_addc_u32 s25, s{ptr_lo+1}, 0"); a("s_mov_b32 s26, 262144"); a("s_mov_b32 s27, 0x20000")
        voffs_setup()
        issue8.sfx = kvsfx
        def issue_static(tile):
            a(f"s_mov_b32 s46, {slot_of(tile)}")
            a(f"s_mov_b32 s45, {tile*8192}")
            issue8("s[24:27]", voffs, "s46", "s45")
        for tile in range(6):
            issue_static(tile)
        a("s_mov_b32 s44, 0")
        a.label(f"LA_{tag}_b1")
        a("s_barrier")
        a("s_add_u32 s44, s44, 1")
        a("s_cmp_lt_u32 s44, 18")
        a(f"s_cbranch_scc1 LA_{tag}_b1")
        if tag == "K":
            a("s_waitcnt vmcnt(40)")
        a("s_barrier")
        issue_static(6); issue_static(7)
        need = (lambda t: t + 1) if tag == "K" else (lambda t: t)
        iss = (lambda t: t + 7 if 1 <= t <= 24 else None) if tag == "K" else (lambda t: t + 6 if 2 <= t <= 25 else None)
        issued = 7
        plan = []
        for t in range(32):
            n = need(t)
            w = None if n > 31 else (issued - n) * 8
            i = iss(t)
            plan.append((t, w, i))
            if i is not None:
                assert i == issued + 1
                issued = i
        steady = [t for (t, w, i) in plan if w == 40 and i is not None]
        t0, t1 = steady[0], steady[-1]
        assert steady == list(range(t0, t1 + 1))
        for (t, w, i) in plan[:t0]:
            if w is not None: a(f"s_waitcnt vmcnt({w})")
            a("s_barrier")
            if i is not None: issue_static(i)
        first_tile = plan[t0][2]
        a(f"s_mov_b32 s45, {first_tile*8192}")
        a(f"s_mov_b32 s47, {slot_of(first_tile) - slot_of.base}")
        a(f"s_mov_b32 s44, {t0}")
        a.label(f"LA_{tag}_loop")
        a("s_waitcnt vmcnt(40)")
        a("s_barrier")
        a(f"s_add_u32 s46, s47, {slot_of.base}")
        issue8("s[24:27]", voffs, "s46", "s45")
        a("s_add_u32 s45, s45, 8192")
        a("s_add_u32 s47, s47, 8192")
        a("s_and_b32 s47, s47, 0xffff")
        a("s_add_u32 s44, s44, 1")
        a(f"s_cmp_le_u32 s44, {t1}")
        a(f"s_cbranch_scc1 LA_{tag}_loop")
        for (t, w, i) in plan[t1 + 1:]:
            assert i is None
            if w is not None: a(f"s_waitcnt vmcnt({w})")
            a("s_barrier")
        a("s_endpgm")
        issue8.sfx = ""

    def k_setup():
        a("v_lshrrev_b32 v1, 4, v0"); a("v_and_b32 v2, 15, v0"); a("v_lshlrev_b32 v8, 8, v1")
        for j in range(4):
            a(f"v_add_u32 v3, {4*j}, v1"); a("v_xor_b32 v3, v3, v2"); a("v_lshlrev_b32 v3, 4, v3"); a(f"v_add_u32 v{4+j}, v3, v8")
    kslot = lambda tile: (tile % 8) * 8192
    kslot.base = 0
    prod_kv("K", 6, k_setup, [4, 5, 6, 7], kslot, 1, 7)
    def v_setup():
        a("v_lshrrev_b32 v1, 4, v0"); a("v_and_b32 v2, 15, v0"); a("v_lshlrev_b32 v8, 8, v1")
        a("v_lshlrev_b32 v3, 2, v1"); a("v_xor_b32 v3, v3, v2"); a("v_lshlrev_b32 v3, 4, v3"); a("v_add_u32 v4, v3, v8")
    vslot = lambda tile: VBASE + ((tile + 2) % 8) * 8192
    vslot.base = VBASE
    prod_kv("V", 8, v_setup, [4, 4, 4, 4], vslot, 2, 6)

    a.label("LA_end")
    a("s_endpgm")
    return dict(name="attn_kernel", grid=(256,1,1), block=(512,1,1), lds=163840, body=a.text(), vgpr=256, sgpr=96, accum=192)

class CfgB:
    def __init__(self, **kw):
        self.depth = 8
        self.stamps = False
        self.mapping = 1
        self.__dict__.update(kw)

def gen_B(cfg):
    a = Asm()
    D = cfg.depth
    NSL = 16
    assert D < NSL
    a("s_cmp_ge_u32 s2, 252")
    a("s_cbranch_scc1 LB_end")
    a("s_load_dwordx4 s[12:15], s[0:1], 32")
    a("s_load_dwordx2 s[18:19], s[0:1], 56")
    stamp(a, cfg, 0)
    a("v_lshrrev_b32 v1, 6, v0")
    a("v_and_b32 v0, 63, v0")
    a("v_readfirstlane_b32 s23, v1")
    if cfg.mapping == 0:
        a("s_mul_hi_u32 s20, s2, %d" % ((2**32 + 8) // 9))
        a("s_mul_i32 s21, s20, 9"); a("s_sub_u32 s21, s2, s21")
    else:
        a("s_and_b32 s24, s2, 7"); a("s_lshr_b32 s25, s2, 3")
        a("s_and_b32 s26, s24, 3")
        a("s_lshr_b32 s27, s24, 2")
        a("s_lshl_b32 s27, s27, 5")
        a("s_add_u32 s25, s25, s27")
        a("s_mul_hi_u32 s21, s25, %d" % ((2**32 + 6) // 7))
        a("s_mul_i32 s27, s21, 7"); a("s_sub_u32 s27, s25, s27")
        a("s_mul_i32 s20, s26, 7"); a("s_add_u32 s20, s20, s27")
    a("s_waitcnt lgkmcnt(0)")
    a("s_mov_b32 s40, s18"); a("s_mov_b32 s41, s19"); a(f"s_mov_b32 s42, {56*256*512}"); a("s_mov_b32 s43, 0x20000")
    a("s_mov_b32 s44, s12"); a("s_mov_b32 s45, s13"); a(f"s_mov_b32 s46, {4096*1152}"); a("s_mov_b32 s47, 0x20000")
    a("s_mov_b32 s48, s14"); a("s_mov_b32 s49, s15"); a(f"s_mov_b32 s50, {896*1152}"); a("s_mov_b32 s51, 0x20000")
    a("v_bfe_u32 v2, v0, 4, 1"); a("v_lshlrev_b32 v2, 17, v2")
    a("v_lshrrev_b32 v3, 5, v0"); a("v_lshlrev_b32 v4, 8, v3"); a("v_add_u32 v2, v2, v4")
    a("v_and_b32 v4, 15, v0"); a("v_lshlrev_b32 v4, 4, v4"); a("v_add_u32 v2, v2, v4")
    a("s_lshl_b32 s28, s20, 9"); a("s_lshl_b32 s29, s23, 6"); a("s_add_u32 s28, s28, s29"); a("s_lshl_b32 s28, s28, 9")
    a("v_lshrrev_b32 v5, 3, v0"); a("s_mov_b32 s24, 1152"); a("v_mul_lo_u32 v5, v5, s24")
    a("v_bfe_u32 v6, v0, 4, 1"); a("v_lshlrev_b32 v6, 2, v6"); a("v_and_b32 v7, 7, v0"); a("v_xor_b32 v6, v6, v7")
    a("v_lshlrev_b32 v6, 4, v6"); a("v_add_u32 v5, v5, v6")
    a(f"s_mul_i32 s29, s23, {1024*1152}"); a("s_lshl_b32 s24, s21, 7"); a("s_add_u32 s29, s29, s24")
    a("s_lshl_b32 s30, s23, 15")
    a("v_and_b32 v6, 15, v0"); a("v_lshrrev_b32 v6, 2, v6")
    a("v_lshlrev_b32 v7, 2, v3"); a("v_add_u32 v7, v7, v6"); a("v_lshlrev_b32 v7, 7, v7")
    a("v_bfe_u32 v10, v0, 4, 1"); a("v_lshlrev_b32 v10, 5, v10"); a("v_add_u32 v7, v7, v10")
    a("v_and_b32 v10, 3, v0"); a("v_lshlrev_b32 v10, 3, v10"); a("v_add_u32 v7, v7, v10")
    a("v_add_u32 v7, s30, v7")
    a("v_lshrrev_b32 v6, 1, v6"); a("v_lshlrev_b32 v6, 6, v6")
    a("v_add_u32 v8, v7, v6")
    a("v_xor_b32 v6, 64, v6"); a("v_add_u32 v9, v7, v6")
    for i in range(32):
        a(f"v_mov_b32 v{16+i}, 0")
    OF = 64
    def issue(k_static_slot):
        sl = k_static_slot
        a(f"buffer_load_dwordx4 {vr(OF+4*sl,4)}, v2, s[40:43], s28 offen")
        a(f"s_add_u32 m0, s30, {sl*2048}")
        a(f"s_add_u32 s31, s29, {8*1152 - 1024}")
        a(f"buffer_load_dwordx4 v5, s[44:47], s29 offen lds")
        a(f"buffer_load_dwordx4 v5, s[44:47], s31 offen offset:1024 lds")
        a("s_add_u32 s28, s28, 512")
        a(f"s_add_u32 s29, s29, {16*1152}")
    def wreads(sl, par):
        out = []
        for nt2 in range(2):
            for v in range(2):
                out.append(f"ds_read_b64_tr_b16 {vr(48 + 8*par + 4*nt2 + 2*v, 2)}, v{8+nt2} offset:{sl*2048 + v*1024}")
        return out
    for k in range(D):
        issue(k % NSL)
    a(f"s_waitcnt vmcnt({3*(D-1)})")
    for r in wreads(0, 0): a(r)
    a("s_mov_b32 s32, 0")
    a.label("LB_loop")
    for kk in range(NSL):
        lab_skip = None
        if kk + D >= NSL:
            lab_skip = a.newlabel("LB_sk")
            a("s_cmp_eq_u32 s32, 3")
            a(f"s_cbranch_scc1 {lab_skip}")
            issue((kk + D) % NSL)
            a(f"s_waitcnt vmcnt({3*(D-1)})")
            lab_join = a.newlabel("LB_jn")
            a(f"s_branch {lab_join}")
            a.label(lab_skip)
            rem = max(0, 63 - (48 + kk + 1))
            a(f"s_waitcnt vmcnt({3*rem})")
            a.label(lab_join)
        else:
            issue((kk + D) % NSL)
            a(f"s_waitcnt vmcnt({3*(D-1)})")
        par = kk & 1
        for r in wreads((kk + 1) % NSL, 1 - par): a(r)
        a("s_waitcnt lgkmcnt(4)")
        for nt2 in range(2):
            a(f"v_mfma_f32_32x32x16_bf16 {vr(16+16*nt2,16)}, {vr(48+8*par+4*nt2,4)}, {vr(OF+4*kk,4)}, {vr(16+16*nt2,16)}")
    a("s_add_u32 s32, s32, 1")
    a("s_cmp_lt_u32 s32, 4")
    a("s_cbranch_scc1 LB_loop")
    stamp(a, cfg, 1)
    a("s_waitcnt lgkmcnt(0)")
    a("s_nop 7"); a("s_nop 7")
    a("s_barrier")
    a("v_lshlrev_b32 v10, 4, v0")
    a("s_lshl_b32 s24, s23, 13")
    a("v_add_u32 v11, s24, v10")
    for q in range(8):
        a(f"ds_write_b128 v11, {vr(16+4*q,4)} offset:{q*1024}")
    a("s_waitcnt lgkmcnt(0)")
    a("s_barrier")
    a("s_lshl_b32 s24, s23, 11")
    a("v_add_u32 v11, s24, v10")
    for e in range(2):
        for w in range(4):
            a(f"ds_read_b128 {vr(64+16*e+4*w,4)}, v11 offset:{w*8192 + e*1024}")
    a("s_waitcnt lgkmcnt(0)")
    for e in range(2):
        for i in range(4):
            b = 64 + 16 * e + i
            a(f"v_add_f32 v{b}, v{b}, v{b+4}")
            a(f"v_add_f32 v{b+8}, v{b+8}, v{b+12}")
            a(f"v_add_f32 v{b}, v{b}, v{b+8}")
    a("v_cvt_pk_bf16_f32 v16, v64, v65"); a("v_cvt_pk_bf16_f32 v17, v66, v67")
    a("v_cvt_pk_bf16_f32 v18, v80, v81"); a("v_cvt_pk_bf16_f32 v19, v82, v83")
    a("s_nop 1")
    a("v_permlane32_swap_b32 v16, v18")
    a("v_permlane32_swap_b32 v17, v19")
    a("v_and_b32 v12, 31, v0"); a("s_mov_b32 s24, 1152"); a("v_mul_lo_u32 v12, v12, s24")
    a("v_lshlrev_b32 v13, 4, v3"); a("v_add_u32 v12, v12, v13")
    a(f"s_mul_i32 s24, s20, {32*1152}"); a("s_lshl_b32 s25, s21, 7"); a("s_add_u32 s24, s24, s25")
    a("s_lshl_b32 s25, s23, 5"); a("s_add_u32 s24, s24, s25")
    a("buffer_store_dwordx4 v[16:19], v12, s[48:51], s24 offen")
    if cfg.stamps:
        a("s_waitcnt vmcnt(0)")
        stamp(a, cfg, 2)
        a("s_waitcnt lgkmcnt(0)")
        a("s_cmp_lg_u32 s23, 0"); a("s_cbranch_scc1 LB_end")
        a("s_mov_b32 s44, s18"); a("s_mov_b32 s45, s19"); a("s_mov_b32 s46, 0x4000000"); a("s_mov_b32 s47, 0x20000")
        for i in range(3):
            a(f"v_mov_b32 v{56+i}, s{60+2*i}")
        a("s_lshl_b32 s24, s2, 5"); a(f"s_add_u32 s24, s24, {0x2000000 + 256*32}")
        a("v_mov_b32 v51, 0")
        a("v_cmp_eq_u32 vcc, 0, v0"); a("s_and_saveexec_b64 s[36:37], vcc")
        a("buffer_store_dwordx4 v[56:59], v51, s[44:47], s24 offen")
    a.label("LB_end")
    a("s_endpgm")
    return dict(name="oproj_kernel", grid=(252,1,1), block=(256,1,1), lds=131072, body=a.text(), vgpr=128, sgpr=96, accum=128)

def build(cfgA, cfgB, path):
    txt = file_text([gen_A(cfgA), gen_B(cfgB)])
    open(path, "w").write(txt)

if __name__ == "__main__":
    build(CfgA(stamps=True), CfgB(stamps=True), "v1s.s")
    build(CfgA(), CfgB(), "v1.s")
    build(CfgA(nt_kv=True), CfgB(), "v1nt.s")
```
